```python
import torch

def _softmax(x, axis=-1):
    return torch.softmax(x, dim=axis)
def _gelu(x):
    return torch.nn.functional.gelu(x, approximate="tanh")
def _silu(x):
    return torch.nn.functional.silu(x)
def _sigmoid(x):
    return torch.sigmoid(x)
def _layernorm(x, axis=-1, eps=1e-5):
    m = x.mean(dim=axis, keepdim=True)
    v = x.var(dim=axis, keepdim=True, unbiased=False)
    return (x - m) / torch.sqrt(v + eps)
def _scatter_add(tgt, idx, src, axis=0):
    return tgt.clone().index_add_(axis, idx, src)
def _segment_sum(src, seg, n):
    out = torch.zeros((n,) + src.shape[1:], dtype=src.dtype)
    return out.index_add_(0, seg, src)
def _pad(x, pw):
    flat = tuple(v for pair in reversed(pw) for v in pair)
    return torch.nn.functional.pad(x, flat)

kernel_name = 'concat_heads__gqa_block_cached__gqa_block_cached__near_ridge'

def setup_inputs():

    _w = (lambda a: (lambda t: t.to(torch.bfloat16) if t.is_floating_point() else t)(torch.as_tensor(a)))
    def _A_setup():
        B, Sq, D = 8, 96, 512
        Hq, Hkv, Sk, Dh = 32, 32, 512, 128
        assert Hq % Hkv == 0, (Hq, Hkv)
        return {
            "x": _w((lambda *s: torch.randn(*s, dtype=torch.bfloat16) * 0.8)(B, Sq, D)),
            "k_cache": _w((lambda *s: torch.randn(*s, dtype=torch.bfloat16) * 0.8)(B, Hkv, Sk, Dh)),
            "v_cache": _w((lambda *s: torch.randn(*s, dtype=torch.bfloat16) * 0.05)(B, Hkv, Sk, Dh)),
            "wq": _w((lambda *s: torch.randn(*s, dtype=torch.bfloat16) * 0.8)(D, Hq * Dh) * (D ** -0.5)),
            "wo": _w((lambda *s: torch.randn(*s, dtype=torch.bfloat16) * 0.05)(Hq * Dh, D) * ((Hq * Dh) ** -0.5)),
        }
    _A_in = _A_setup()

    def _B_setup():
        B, Sq, D = 8, 96, 512
        Hq, Hkv, Sk, Dh = 32, 32, 512, 128
        assert Hq % Hkv == 0, (Hq, Hkv)
        return {
            "x": _w((lambda *s: torch.randn(*s, dtype=torch.bfloat16) * 0.8)(B, Sq, D)),
            "k_cache": _w((lambda *s: torch.randn(*s, dtype=torch.bfloat16) * 0.8)(B, Hkv, Sk, Dh)),
            "v_cache": _w((lambda *s: torch.randn(*s, dtype=torch.bfloat16) * 0.05)(B, Hkv, Sk, Dh)),
            "wq": _w((lambda *s: torch.randn(*s, dtype=torch.bfloat16) * 0.8)(D, Hq * Dh) * (D ** -0.5)),
            "wo": _w((lambda *s: torch.randn(*s, dtype=torch.bfloat16) * 0.05)(Hq * Dh, D) * ((Hq * Dh) ** -0.5)),
        }
    _B_in = _B_setup()

    return {
        "A_x": _A_in["x"],
        "A_k_cache": _A_in["k_cache"],
        "A_v_cache": _A_in["v_cache"],
        "A_wq": _A_in["wq"],
        "A_wo": _A_in["wo"],
        "B_x": _B_in["x"],
        "B_k_cache": _B_in["k_cache"],
        "B_v_cache": _B_in["v_cache"],
        "B_wq": _B_in["wq"],
        "B_wo": _B_in["wo"],
    }

def reference(A_x, A_k_cache, A_v_cache, A_wq, A_wo, B_x, B_k_cache, B_v_cache, B_wq, B_wo):
    def _A_ref(x, k_cache, v_cache, wq, wo):
        B, Sq, D = x.shape
        Hq, Dh = 32, 128
        Hkv = k_cache.shape[1]
        rep = Hq // Hkv
        q = (lambda x, *d: x.permute(*d))((x @ wq).reshape(B, Sq, Hq, Dh), 0, 2, 1, 3)
        k = (lambda x, n, axis: torch.repeat_interleave(x, n, dim=axis))(k_cache, rep, axis=1)
        v = (lambda x, n, axis: torch.repeat_interleave(x, n, dim=axis))(v_cache, rep, axis=1)
        scores = torch.einsum("bhqd,bhkd->bhqk", q, k) * (Dh ** -0.5)
        p = _softmax(scores, axis=-1)
        o = torch.einsum("bhqk,bhkd->bhqd", p, v)
        return (lambda x, *d: x.permute(*d))(o, 0, 2, 1, 3).reshape(B, Sq, Hq * Dh) @ wo

    def _B_ref(x, k_cache, v_cache, wq, wo):
        B, Sq, D = x.shape
        Hq, Dh = 32, 128
        Hkv = k_cache.shape[1]
        rep = Hq // Hkv
        q = (lambda x, *d: x.permute(*d))((x @ wq).reshape(B, Sq, Hq, Dh), 0, 2, 1, 3)
        k = (lambda x, n, axis: torch.repeat_interleave(x, n, dim=axis))(k_cache, rep, axis=1)
        v = (lambda x, n, axis: torch.repeat_interleave(x, n, dim=axis))(v_cache, rep, axis=1)
        scores = torch.einsum("bhqd,bhkd->bhqk", q, k) * (Dh ** -0.5)
        p = _softmax(scores, axis=-1)
        o = torch.einsum("bhqk,bhkd->bhqd", p, v)
        return (lambda x, *d: x.permute(*d))(o, 0, 2, 1, 3).reshape(B, Sq, Hq * Dh) @ wo

    a = _A_ref(A_x, A_k_cache, A_v_cache, A_wq, A_wo)
    b = _B_ref(B_x, B_k_cache, B_v_cache, B_wq, B_wo)
    return torch.concatenate([a, b], axis=-1)
```

```python
NAME = "concat_heads__gqa_block_cached__gqa_block_cached__near_ridge"
OUT = "cdna_kernels/%s.s" % NAME
L = []
def e(s): L.append("    " + s)
def lab(s): L.append(s + ":")
def nop(n):
    while n > 0:
        k = min(n, 16); e("s_nop %d" % (k-1)); n -= k

NS = 8
D = 6
WS_PART = 16*1024*1024

def vr(base, n=1):
    return "v%d" % base if n == 1 else "v[%d:%d]" % (base, base+n-1)

vQ = 0
vO = 32
vS = 96
vP = 112
vF = 120
vB = 152
vKa = 176
vVa = 184
vWa = 188
vBo = 192
vM = 193; vL = 194; vT0 = 195; vT1 = 196; vT2 = 197; vAl = 198; vOut = 199
vLane = 200
NV = 208

def lane_setup():
    e("v_and_b32 v%d, 63, v0" % vLane)
    e("v_lshrrev_b32 v1, 6, v0")
    e("s_nop 0")
    e("v_readfirstlane_b32 s40, v1")

def consumer_addr_setup(need_k):
    l = vLane
    e("v_and_b32 v1, 31, v%d" % l)
    e("v_lshrrev_b32 v2, 5, v%d" % l)
    e("v_bfe_u32 v3, v%d, 2, 2" % l)
    e("v_and_b32 v4, 3, v%d" % l)
    e("v_bfe_u32 v5, v%d, 4, 1" % l)
    if need_k:
        e("v_and_b32 v6, 15, v1")
        e("v_lshlrev_b32 v7, 8, v1")
        for s in range(8):
            e("v_add_u32 v8, %d, v2" % (2*s))
            e("v_xor_b32 v8, v8, v6")
            e("v_lshlrev_b32 v8, 4, v8")
            e("v_add_u32 v%d, v7, v8" % (vKa+s))
    e("v_and_b32 v8, 1, v4")
    e("v_lshl_add_u32 v8, v5, 1, v8")
    e("v_lshlrev_b32 v8, 4, v8")
    e("v_lshrrev_b32 v9, 1, v4")
    e("v_lshl_add_u32 v8, v9, 3, v8")
    for db in range(4):
        e("v_xor_b32 v9, %d, v3" % db)
        e("v_lshl_add_u32 v9, v9, 6, v8")
        e("v_lshl_add_u32 v10, v2, 2, v3")
        e("v_lshl_add_u32 v%d, v10, 8, v9" % (vVa+db))
        e("v_lshl_add_u32 v10, v2, 3, v3")
        e("v_lshl_add_u32 v%d, v10, 8, v9" % (vWa+db))

def producer(tiles, label_end):
    base = {"K": 8, "V": 16, "W": 24}
    T = len(tiles)
    for t, (srd, soff, ty) in enumerate(tiles):
        slot = t % NS
        e("s_mov_b32 s41, %d" % soff)
        for n in range(8):
            e("s_mov_b32 m0, %d" % (slot*8192 + n*1024))
            e("s_nop 0")
            e("buffer_load_dwordx4 v%d, s[%d:%d], s41 offen lds" % (base[ty]+n, srd, srd+3))
        if t >= D:
            e("s_waitcnt vmcnt(%d)" % (8*D))
            e("s_barrier")
    for u in range(T-D, T):
        e("s_waitcnt vmcnt(%d)" % (8*(T-1-u)))
        e("s_barrier")
    e("s_branch %s" % label_end)

def producer_setup(wrs):
    l = vLane
    e("v_lshrrev_b32 v2, 4, v%d" % l)
    e("v_and_b32 v3, 15, v%d" % l)
    e("s_mov_b32 s42, %d" % wrs)
    e("v_lshlrev_b32 v4, 2, v2")
    e("v_xor_b32 v4, v4, v3")
    e("v_lshlrev_b32 v4, 4, v4")
    for n in range(8):
        e("v_add_u32 v5, %d, v2" % (4*n))
        e("v_and_b32 v6, 15, v5")
        e("v_xor_b32 v6, v6, v3")
        e("v_lshlrev_b32 v6, 4, v6")
        e("v_lshl_add_u32 v%d, v5, 8, v6" % (8+n))
        e("v_lshl_add_u32 v%d, v5, 8, v4" % (16+n))
        e("v_mul_lo_u32 v6, v5, s42")
        e("v_add_u32 v%d, v6, v4" % (24+n))

def gemm_phase(ntiles, t0, bsrd):
    def bload(u):
        if u >= ntiles: return
        for kk in range(2):
            e("buffer_load_dwordx4 %s, v%d, s[%d:%d], 0 offen offset:%d" % (vr(vB + (u%3)*8 + kk*4, 4), vBo, bsrd, bsrd+3, u*64+kk*32))
    bload(0); bload(1)
    for u in range(ntiles):
        slot = (t0+u) % NS
        bload(u+2)
        e("s_barrier")
        for kk in range(2):
            for db in range(4):
                f = vF + (kk*4+db)*4
                for uu in range(2):
                    e("ds_read_b64_tr_b16 %s, v%d offset:%d" % (vr(f+2*uu, 2), vWa+db, slot*8192 + (16*kk+4*uu)*256))
        rem = 2*min(2, ntiles-1-u)
        e("s_waitcnt vmcnt(%d) lgkmcnt(0)" % rem)
        for kk in range(2):
            for db in range(4):
                f = vF + (kk*4+db)*4
                c = "0" if (u == 0 and kk == 0) else vr(vO+db*16, 16)
                e("v_mfma_f32_32x32x16_bf16 %s, %s, %s, %s" % (vr(vO+db*16, 16), vr(f, 4), vr(vB+(u%3)*8+kk*4, 4), c))

def kernel_attn():
    K1 = "attn_kernel"
    L.append(".globl %s" % K1); L.append(".p2align 8"); L.append(".type %s,@function" % K1)
    lab(K1)
    e("s_cmp_ge_u32 s2, 512"); e("s_cbranch_scc1 A_end")
    lane_setup()
    e("s_lshr_b32 s3, s2, 8")
    e("s_bfe_u32 s4, s2, 0x30005")
    e("s_and_b32 s5, s2, 31")
    e("s_mul_i32 s6, s3, 40")
    e("s_add_u32 s6, s0, s6"); e("s_addc_u32 s7, s1, 0")
    e("s_load_dwordx4 s[8:11], s[6:7], 0")
    e("s_load_dwordx4 s[12:15], s[6:7], 16")
    e("s_load_dwordx2 s[16:17], s[0:1], 96")
    e("s_waitcnt lgkmcnt(0)")
    e("s_lshl_b32 s41, s4, 5"); e("s_add_u32 s41, s41, s5"); e("s_lshl_b32 s41, s41, 17")
    e("s_add_u32 s20, s10, s41"); e("s_addc_u32 s21, s11, 0"); e("s_and_b32 s21, s21, 0xffff"); e("s_mov_b32 s22, 131072"); e("s_mov_b32 s23, 0x20000")
    e("s_add_u32 s24, s12, s41"); e("s_addc_u32 s25, s13, 0"); e("s_and_b32 s25, s25, 0xffff"); e("s_mov_b32 s26, 131072"); e("s_mov_b32 s27, 0x20000")
    e("s_lshl_b32 s41, s5, 8")
    e("s_add_u32 s28, s14, s41"); e("s_addc_u32 s29, s15, 0"); e("s_and_b32 s29, s29, 0xffff"); e("s_sub_u32 s30, 4194304, s41"); e("s_mov_b32 s31, 0x20000")
    e("s_mul_i32 s41, s4, 98304")
    e("s_add_u32 s32, s8, s41"); e("s_addc_u32 s33, s9, 0"); e("s_and_b32 s33, s33, 0xffff"); e("s_mov_b32 s34, 98304"); e("s_mov_b32 s35, 0x20000")
    e("s_mov_b32 s36, s16"); e("s_and_b32 s37, s17, 0xffff"); e("s_mov_b32 s38, 12582912"); e("s_mov_b32 s39, 0x20000")
    e("s_cmp_eq_u32 s40, 3"); e("s_cbranch_scc1 A_prod")
    consumer_addr_setup(True)
    e("s_lshl_b32 s41, s40, 5")
    e("v_add_u32 v8, s41, v1")
    e("v_lshlrev_b32 v8, 10, v8")
    e("v_lshl_add_u32 v%d, v2, 4, v8" % vBo)
    e("s_mul_i32 s42, s3, 768"); e("s_mul_i32 s43, s4, 96"); e("s_add_u32 s42, s42, s43"); e("s_add_u32 s42, s42, s41")
    e("v_add_u32 v8, s42, v1")
    e("v_lshlrev_b32 v8, 13, v8")
    e("s_lshl_b32 s43, s5, 8")
    e("v_add_u32 v8, s43, v8")
    e("v_lshl_add_u32 v%d, v2, 4, v8" % vOut)
    e("s_mov_b32 s44, 0x3e0293ee")
    gemm_phase(16, 0, 32)
    nop(16)
    for db in range(4):
        for t in range(2):
            for p in range(4):
                r = vO + db*16 + 8*t + 2*p
                e("v_cvt_pk_bf16_f32 v%d, v%d, v%d" % (vQ + (2*db+t)*4 + p, r, r+1))
    for r in range(64): e("v_mov_b32 v%d, 0" % (vO+r))
    e("v_mov_b32 v%d, 0xff800000" % vM); e("v_mov_b32 v%d, 0" % vL)
    for it in range(16):
        ks = (16 + 2*it) % NS; vs = (17 + 2*it) % NS
        e("s_barrier")
        for s in range(8):
            e("ds_read_b128 %s, v%d offset:%d" % (vr(vF+4*s, 4), vKa+s, ks*8192))
        e("s_waitcnt lgkmcnt(0)")
        for s in range(8):
            c = "0" if s == 0 else vr(vS, 16)
            e("v_mfma_f32_32x32x16_bf16 %s, %s, %s, %s" % (vr(vS, 16), vr(vF+4*s, 4), vr(vQ+4*s, 4), c))
        e("s_barrier")
        for t in range(2):
            for db in range(4):
                f = vF + (t*4+db)*4
                for uu in range(2):
                    e("ds_read_b64_tr_b16 %s, v%d offset:%d" % (vr(f+2*uu, 2), vVa+db, vs*8192 + (16*t+8*uu)*256))
        nop(8)
        e("v_max3_f32 v%d, v%d, v%d, v%d" % (vT0, vS, vS+1, vS+2))
        for k in range(3, 15, 2):
            e("v_max3_f32 v%d, v%d, v%d, v%d" % (vT0, vT0, vS+k, vS+k+1))
        e("v_max_f32 v%d, v%d, v%d" % (vT0, vT0, vS+15))
        e("v_mov_b32 v%d, v%d" % (vT1, vT0))
        e("s_nop 1")
        e("v_permlane32_swap_b32 v%d, v%d" % (vT0, vT1))
        e("s_nop 1")
        e("v_max3_f32 v%d, v%d, v%d, v%d" % (vT0, vT0, vT1, vM))
        e("v_sub_f32 v%d, v%d, v%d" % (vT1, vM, vT0))
        e("v_mul_f32 v%d, s44, v%d" % (vT1, vT1))
        e("v_exp_f32 v%d, v%d" % (vAl, vT1))
        e("v_mov_b32 v%d, v%d" % (vM, vT0))
        e("v_mul_f32 v%d, s44, v%d" % (vT0, vT0))
        for k in range(16):
            e("v_fma_f32 v%d, v%d, s44, -v%d" % (vS+k, vS+k, vT0))
        for k in range(16):
            e("v_exp_f32 v%d, v%d" % (vS+k, vS+k))
        e("v_mul_f32 v%d, v%d, v%d" % (vL, vL, vAl))
        for k in range(16):
            e("v_add_f32 v%d, v%d, v%d" % (vL, vL, vS+k))
        for p in range(8):
            e("v_cvt_pk_bf16_f32 v%d, v%d, v%d" % (vP+p, vS+2*p, vS+2*p+1))
        for r in range(64):
            e("v_mul_f32 v%d, v%d, v%d" % (vO+r, vO+r, vAl))
        e("s_waitcnt lgkmcnt(0)")
        e("s_nop 1")
        for t in range(2):
            for db in range(4):
                f = vF + (t*4+db)*4
                e("v_mfma_f32_32x32x16_bf16 %s, %s, %s, %s" % (vr(vO+db*16, 16), vr(f, 4), vr(vP+4*t, 4), vr(vO+db*16, 16)))
    nop(16)
    e("v_mov_b32 v%d, v%d" % (vT1, vL))
    e("s_nop 1")
    e("v_permlane32_swap_b32 v%d, v%d" % (vL, vT1))
    e("s_nop 1")
    e("v_add_f32 v%d, v%d, v%d" % (vL, vL, vT1))
    e("v_rcp_f32 v%d, v%d" % (vL, vL))
    e("s_nop 1")
    for r in range(64):
        e("v_mul_f32 v%d, v%d, v%d" % (vO+r, vO+r, vL))
    for db in range(4):
        for t in range(2):
            for p in range(4):
                r = vO + db*16 + 8*t + 2*p
                e("v_cvt_pk_bf16_f32 v%d, v%d, v%d" % (vQ + (2*db+t)*4 + p, r, r+1))
            e("buffer_store_dwordx4 %s, v%d, s[36:39], 0 offen offset:%d" % (vr(vQ+(2*db+t)*4, 4), vOut, (32*db+16*t)*2))
    e("s_branch A_end")
    lab("A_prod")
    producer_setup(8192)
    tiles = [(28, u*32*8192, "W") for u in range(16)]
    for it in range(16):
        tiles.append((20, it*8192, "K")); tiles.append((24, it*8192, "V"))
    producer(tiles, "A_end")
    lab("A_end")
    e("s_endpgm")
    return K1

def kernel_oproj():
    K2 = "oproj_kernel"
    L.append(".globl %s" % K2); L.append(".p2align 8"); L.append(".type %s,@function" % K2)
    lab(K2)
    e("s_cmp_ge_u32 s2, 256"); e("s_cbranch_scc1 B_end")
    lane_setup()
    e("s_lshr_b32 s3, s2, 7")
    e("s_bfe_u32 s4, s2, 0x30004")
    e("s_bfe_u32 s5, s2, 0x20002")
    e("s_and_b32 s45, s2, 3")
    e("s_mul_i32 s6, s3, 40")
    e("s_add_u32 s6, s0, s6"); e("s_addc_u32 s7, s1, 0")
    e("s_load_dwordx2 s[8:9], s[6:7], 32")
    e("s_load_dwordx2 s[16:17], s[0:1], 96")
    e("s_waitcnt lgkmcnt(0)")
    e("s_lshl_b32 s41, s45, 20"); e("s_lshl_b32 s42, s5, 8"); e("s_add_u32 s41, s41, s42")
    e("s_add_u32 s28, s8, s41"); e("s_addc_u32 s29, s9, 0"); e("s_and_b32 s29, s29, 0xffff"); e("s_sub_u32 s30, 4194304, s41"); e("s_mov_b32 s31, 0x20000")
    e("s_mov_b32 s32, s16"); e("s_and_b32 s33, s17, 0xffff"); e("s_mov_b32 s34, 12582912"); e("s_mov_b32 s35, 0x20000")
    e("s_add_u32 s36, s16, %d" % WS_PART); e("s_addc_u32 s37, s17, 0"); e("s_and_b32 s37, s37, 0xffff"); e("s_mov_b32 s38, 12582912"); e("s_mov_b32 s39, 0x20000")
    e("s_cmp_eq_u32 s40, 3"); e("s_cbranch_scc1 B_prod")
    consumer_addr_setup(False)
    e("s_lshl_b32 s41, s40, 5")
    e("s_mul_i32 s42, s3, 768"); e("s_mul_i32 s43, s4, 96"); e("s_add_u32 s42, s42, s43"); e("s_add_u32 s42, s42, s41")
    e("v_add_u32 v8, s42, v1")
    e("v_lshlrev_b32 v9, 13, v8")
    e("s_lshl_b32 s43, s45, 11")
    e("v_add_u32 v9, s43, v9")
    e("v_lshl_add_u32 v%d, v2, 4, v9" % vBo)
    e("v_lshlrev_b32 v9, 11, v8")
    e("s_mul_i32 s43, s45, 3145728"); e("s_lshl_b32 s42, s5, 9"); e("s_add_u32 s43, s43, s42")
    e("v_add_u32 v9, s43, v9")
    e("v_lshl_add_u32 v%d, v2, 5, v9" % vOut)
    gemm_phase(32, 0, 32)
    nop(16)
    for db in range(4):
        for t in range(2):
            r = vO + db*16 + 8*t
            e("buffer_store_dwordx4 %s, v%d, s[36:39], 0 offen offset:%d" % (vr(r, 4), vOut, (32*db+16*t)*4))
            e("buffer_store_dwordx4 %s, v%d, s[36:39], 0 offen offset:%d" % (vr(r+4, 4), vOut, (32*db+16*t)*4+16))
    e("s_branch B_end")
    lab("B_prod")
    producer_setup(1024)
    tiles = [(28, u*32*1024, "W") for u in range(32)]
    producer(tiles, "B_end")
    lab("B_end")
    e("s_endpgm")
    return K2

def kernel_reduce():
    K3 = "reduce_kernel"
    L.append(".globl %s" % K3); L.append(".p2align 8"); L.append(".type %s,@function" % K3)
    lab(K3)
    e("s_cmp_ge_u32 s2, 384"); e("s_cbranch_scc1 C_end")
    e("s_load_dwordx2 s[8:9], s[0:1], 80")
    e("s_load_dwordx2 s[16:17], s[0:1], 96")
    e("s_waitcnt lgkmcnt(0)")
    e("s_add_u32 s36, s16, %d" % WS_PART); e("s_addc_u32 s37, s17, 0"); e("s_and_b32 s37, s37, 0xffff"); e("s_mov_b32 s38, 12582912"); e("s_mov_b32 s39, 0x20000")
    e("s_mov_b32 s32, s8"); e("s_and_b32 s33, s9, 0xffff"); e("s_mov_b32 s34, 1572864"); e("s_mov_b32 s35, 0x20000")
    e("s_lshl_b32 s3, s2, 8")
    e("v_add_u32 v1, s3, v0")
    e("v_lshlrev_b32 v2, 5, v1")
    for k in range(4):
        e("s_mov_b32 s41, %d" % (k*3145728))
        e("buffer_load_dwordx4 v[%d:%d], v2, s[36:39], s41 offen" % (8+8*k, 11+8*k))
        e("buffer_load_dwordx4 v[%d:%d], v2, s[36:39], s41 offen offset:16" % (12+8*k, 15+8*k))
    e("v_lshrrev_b32 v3, 6, v1")
    e("v_and_b32 v4, 63, v1")
    e("v_cmp_le_u32 vcc, 768, v3")
    e("s_nop 1")
    e("v_cndmask_b32 v5, 0, 1, vcc")
    e("v_mul_u32_u24 v6, 768, v5")
    e("v_sub_u32 v3, v3, v6")
    e("v_lshlrev_b32 v3, 11, v3")
    e("v_lshl_add_u32 v3, v5, 10, v3")
    e("v_lshl_add_u32 v3, v4, 4, v3")
    e("s_waitcnt vmcnt(0)")
    for k in range(1, 4):
        for r in range(8):
            e("v_add_f32 v%d, v%d, v%d" % (8+r, 8+r, 8+8*k+r))
    for p in range(4):
        e("v_cvt_pk_bf16_f32 v%d, v%d, v%d" % (40+p, 8+2*p, 9+2*p))
    e("buffer_store_dwordx4 v[40:43], v3, s[32:35], 0 offen")
    lab("C_end")
    e("s_endpgm")
    return K3

hdr = """; @launch kernel=attn_kernel grid=(512,1,1) block=(256,1,1) lds=65536
; @launch kernel=oproj_kernel grid=(256,1,1) block=(256,1,1) lds=65536
; @launch kernel=reduce_kernel grid=(384,1,1) block=(256,1,1) lds=0
.amdgcn_target "amdgcn-amd-amdhsa--gfx950"
.text
"""
ks = [(kernel_attn(), NV), (kernel_oproj(), NV), (kernel_reduce(), 64)]
body = "\n".join(L) + "\n"
tail = '.section .rodata,"a"\n'
for k, nv in ks:
    tail += """.p2align 6
.amdhsa_kernel %s
  .amdhsa_next_free_vgpr %d
  .amdhsa_next_free_sgpr 96
  .amdhsa_accum_offset %d
  .amdhsa_group_segment_fixed_size 0
  .amdhsa_kernarg_size 104
  .amdhsa_user_sgpr_count 2
  .amdhsa_user_sgpr_kernarg_segment_ptr 1
  .amdhsa_system_sgpr_workgroup_id_x 1
.end_amdhsa_kernel
""" % (k, nv, nv)
open(OUT, "w").write(hdr + body + tail)
print("written", len(L), "lines")
```

```python
import os
NAME = "concat_heads__gqa_block_cached__gqa_block_cached__near_ridge"
OUT = os.environ.get("OUTF", "cdna_kernels/%s.s" % NAME)
import os
SKIP = os.environ.get("SKIP","0")=="1"
L = []
def e(s):
    if SKIP and INCONS[0] and not s.startswith("s_barrier") and not s.startswith("s_branch"): return
    L.append("    " + s)
INCONS=[False]
def lab(s): L.append(s + ":")
def nop(n):
    while n > 0:
        k = min(n, 16); e("s_nop %d" % (k-1)); n -= k

NS = int(os.environ.get("NS","8"))
D = int(os.environ.get("DD","6"))
WS_PART = 16*1024*1024

def vr(base, n=1):
    return "v%d" % base if n == 1 else "v[%d:%d]" % (base, base+n-1)

vQ = 0
vO = 32
vS = 96
vP = 112
vF = 120
vB = 152
vKa = 176
vVa = 184
vWa = 188
vBo = 192
vM = 193; vL = 194; vT0 = 195; vT1 = 196; vT2 = 197; vAl = 198; vOut = 199
vLane = 200
NV = 208

def lane_setup():
    e("v_and_b32 v%d, 63, v0" % vLane)
    e("v_lshrrev_b32 v1, 6, v0")
    e("s_nop 0")
    e("v_readfirstlane_b32 s40, v1")

def consumer_addr_setup(need_k):
    l = vLane
    e("v_and_b32 v1, 31, v%d" % l)
    e("v_lshrrev_b32 v2, 5, v%d" % l)
    e("v_bfe_u32 v3, v%d, 2, 2" % l)
    e("v_and_b32 v4, 3, v%d" % l)
    e("v_bfe_u32 v5, v%d, 4, 1" % l)
    if need_k:
        e("v_and_b32 v6, 15, v1")
        e("v_lshlrev_b32 v7, 8, v1")
        for s in range(8):
            e("v_add_u32 v8, %d, v2" % (2*s))
            e("v_xor_b32 v8, v8, v6")
            e("v_lshlrev_b32 v8, 4, v8")
            e("v_add_u32 v%d, v7, v8" % (vKa+s))
    e("v_and_b32 v8, 1, v4")
    e("v_lshl_add_u32 v8, v5, 1, v8")
    e("v_lshlrev_b32 v8, 4, v8")
    e("v_lshrrev_b32 v9, 1, v4")
    e("v_lshl_add_u32 v8, v9, 3, v8")
    for db in range(4):
        e("v_xor_b32 v9, %d, v3" % db)
        e("v_lshl_add_u32 v9, v9, 6, v8")
        e("v_lshl_add_u32 v10, v2, 2, v3")
        e("v_lshl_add_u32 v%d, v10, 8, v9" % (vVa+db))
        e("v_lshl_add_u32 v10, v2, 3, v3")
        e("v_lshl_add_u32 v%d, v10, 8, v9" % (vWa+db))

def producer(tiles, label_end):
    base = {"K": 8, "V": 16, "W": 24}
    T = len(tiles)
    for t, (srd, soff, ty) in enumerate(tiles):
        slot = t % NS
        if ty in "KV" and ROT:
            e("s_add_u32 s41, s46, %d" % (soff//8192)); e("s_and_b32 s41, s41, 15"); e("s_lshl_b32 s41, s41, 13")
        else:
            e("s_mov_b32 s41, %d" % soff)
        for n in range(8):
            e("s_mov_b32 m0, %d" % (slot*8192 + n*1024))
            e("s_nop 0")
            e("buffer_load_dwordx4 v%d, s[%d:%d], s41 offen lds" % (base[ty]+n, srd, srd+3))
        if t >= D:
            e("s_waitcnt vmcnt(%d)" % (8*D))
            e("s_barrier")
    for u in range(T-D, T):
        e("s_waitcnt vmcnt(%d)" % (8*(T-1-u)))
        e("s_barrier")
    e("s_branch %s" % label_end)

ROT = os.environ.get("ROT","0")=="1"
def producer_setup(wrs):
    e("s_mul_i32 s46, s2, 5"); e("s_lshr_b32 s47, s2, 4"); e("s_add_u32 s46, s46, s47"); e("s_and_b32 s46, s46, 15")
    l = vLane
    e("v_lshrrev_b32 v2, 4, v%d" % l)
    e("v_and_b32 v3, 15, v%d" % l)
    e("s_mov_b32 s42, %d" % wrs)
    e("v_lshlrev_b32 v4, 2, v2")
    e("v_xor_b32 v4, v4, v3")
    e("v_lshlrev_b32 v4, 4, v4")
    for n in range(8):
        e("v_add_u32 v5, %d, v2" % (4*n))
        e("v_and_b32 v6, 15, v5")
        e("v_xor_b32 v6, v6, v3")
        e("v_lshlrev_b32 v6, 4, v6")
        e("v_lshl_add_u32 v%d, v5, 8, v6" % (8+n))
        e("v_lshl_add_u32 v%d, v5, 8, v4" % (16+n))
        e("v_mul_lo_u32 v6, v5, s42")
        e("v_add_u32 v%d, v6, v4" % (24+n))

def gemm_phase(ntiles, t0, bsrd):
    def bload(u):
        if u >= ntiles: return
        for kk in range(2):
            e("buffer_load_dwordx4 %s, v%d, s[%d:%d], 0 offen offset:%d" % (vr(vB + (u%3)*8 + kk*4, 4), vBo, bsrd, bsrd+3, u*64+kk*32))
    bload(0); bload(1)
    for u in range(ntiles):
        slot = (t0+u) % NS
        bload(u+2)
        e("s_barrier")
        for kk in range(2):
            for db in range(4):
                f = vF + (kk*4+db)*4
                for uu in range(2):
                    e("ds_read_b64_tr_b16 %s, v%d offset:%d" % (vr(f+2*uu, 2), vWa+db, slot*8192 + (16*kk+4*uu)*256))
        rem = 2*min(2, ntiles-1-u)
        e("s_waitcnt vmcnt(%d) lgkmcnt(0)" % rem)
        for kk in range(2):
            for db in range(4):
                f = vF + (kk*4+db)*4
                c = "0" if (u == 0 and kk == 0) else vr(vO+db*16, 16)
                e("v_mfma_f32_32x32x16_bf16 %s, %s, %s, %s" % (vr(vO+db*16, 16), vr(f, 4), vr(vB+(u%3)*8+kk*4, 4), c))

def kernel_attn():
    K1 = "attn_kernel"
    L.append(".globl %s" % K1); L.append(".p2align 8"); L.append(".type %s,@function" % K1)
    lab(K1)
    e("s_cmp_ge_u32 s2, 512"); e("s_cbranch_scc1 A_end")
    lane_setup()
    e("s_lshr_b32 s3, s2, 8")
    e("s_bfe_u32 s4, s2, 0x30005")
    e("s_and_b32 s5, s2, 31")
    e("s_mul_i32 s6, s3, 40")
    e("s_add_u32 s6, s0, s6"); e("s_addc_u32 s7, s1, 0")
    e("s_load_dwordx4 s[8:11], s[6:7], 0")
    e("s_load_dwordx4 s[12:15], s[6:7], 16")
    e("s_load_dwordx2 s[16:17], s[0:1], 96")
    e("s_waitcnt lgkmcnt(0)")
    e("s_lshl_b32 s41, s4, 5"); e("s_add_u32 s41, s41, s5"); e("s_lshl_b32 s41, s41, 17")
    e("s_add_u32 s20, s10, s41"); e("s_addc_u32 s21, s11, 0"); e("s_and_b32 s21, s21, 0xffff"); e("s_mov_b32 s22, 131072"); e("s_mov_b32 s23, 0x20000")
    e("s_add_u32 s24, s12, s41"); e("s_addc_u32 s25, s13, 0"); e("s_and_b32 s25, s25, 0xffff"); e("s_mov_b32 s26, 131072"); e("s_mov_b32 s27, 0x20000")
    e("s_lshl_b32 s41, s5, 8")
    e("s_add_u32 s28, s14, s41"); e("s_addc_u32 s29, s15, 0"); e("s_and_b32 s29, s29, 0xffff"); e("s_sub_u32 s30, 4194304, s41"); e("s_mov_b32 s31, 0x20000")
    e("s_mul_i32 s41, s4, 98304")
    e("s_add_u32 s32, s8, s41"); e("s_addc_u32 s33, s9, 0"); e("s_and_b32 s33, s33, 0xffff"); e("s_mov_b32 s34, 98304"); e("s_mov_b32 s35, 0x20000")
    e("s_mov_b32 s36, s16"); e("s_and_b32 s37, s17, 0xffff"); e("s_mov_b32 s38, 12582912"); e("s_mov_b32 s39, 0x20000")
    e("s_cmp_eq_u32 s40, 3"); e("s_cbranch_scc1 A_prod")
    consumer_addr_setup(True)
    e("s_lshl_b32 s41, s40, 5")
    e("v_add_u32 v8, s41, v1")
    e("v_lshlrev_b32 v8, 10, v8")
    e("v_lshl_add_u32 v%d, v2, 4, v8" % vBo)
    e("s_mul_i32 s42, s3, 768"); e("s_mul_i32 s43, s4, 96"); e("s_add_u32 s42, s42, s43"); e("s_add_u32 s42, s42, s41")
    e("v_add_u32 v8, s42, v1")
    e("v_lshlrev_b32 v8, 13, v8")
    e("s_lshl_b32 s43, s5, 8")
    e("v_add_u32 v8, s43, v8")
    e("v_lshl_add_u32 v%d, v2, 4, v8" % vOut)
    e("s_mov_b32 s44, 0x3e0293ee")
    INCONS[0]=True
    gemm_phase(16, 0, 32)
    nop(16)
    for db in range(4):
        for t in range(2):
            for p in range(4):
                r = vO + db*16 + 8*t + 2*p
                e("v_cvt_pk_bf16_f32 v%d, v%d, v%d" % (vQ + (2*db+t)*4 + p, r, r+1))
    for r in range(64): e("v_mov_b32 v%d, 0" % (vO+r))
    e("v_mov_b32 v%d, 0xff800000" % vM); e("v_mov_b32 v%d, 0" % vL)
    for it in range(16):
        ks = (16 + 2*it) % NS; vs = (17 + 2*it) % NS
        e("s_barrier")
        for s in range(8):
            e("ds_read_b128 %s, v%d offset:%d" % (vr(vF+4*s, 4), vKa+s, ks*8192))
        e("s_waitcnt lgkmcnt(0)")
        for s in range(8):
            c = "0" if s == 0 else vr(vS, 16)
            e("v_mfma_f32_32x32x16_bf16 %s, %s, %s, %s" % (vr(vS, 16), vr(vF+4*s, 4), vr(vQ+4*s, 4), c))
        e("s_barrier")
        for t in range(2):
            for db in range(4):
                f = vF + (t*4+db)*4
                for uu in range(2):
                    e("ds_read_b64_tr_b16 %s, v%d offset:%d" % (vr(f+2*uu, 2), vVa+db, vs*8192 + (16*t+8*uu)*256))
        nop(8)
        e("v_max3_f32 v%d, v%d, v%d, v%d" % (vT0, vS, vS+1, vS+2))
        for k in range(3, 15, 2):
            e("v_max3_f32 v%d, v%d, v%d, v%d" % (vT0, vT0, vS+k, vS+k+1))
        e("v_max_f32 v%d, v%d, v%d" % (vT0, vT0, vS+15))
        e("v_mov_b32 v%d, v%d" % (vT1, vT0))
        e("s_nop 1")
        e("v_permlane32_swap_b32 v%d, v%d" % (vT0, vT1))
        e("s_nop 1")
        e("v_max3_f32 v%d, v%d, v%d, v%d" % (vT0, vT0, vT1, vM))
        e("v_sub_f32 v%d, v%d, v%d" % (vT1, vM, vT0))
        e("v_mul_f32 v%d, s44, v%d" % (vT1, vT1))
        e("v_exp_f32 v%d, v%d" % (vAl, vT1))
        e("v_mov_b32 v%d, v%d" % (vM, vT0))
        e("v_mul_f32 v%d, s44, v%d" % (vT0, vT0))
        for k in range(16):
            e("v_fma_f32 v%d, v%d, s44, -v%d" % (vS+k, vS+k, vT0))
        for k in range(16):
            e("v_exp_f32 v%d, v%d" % (vS+k, vS+k))
        e("v_mul_f32 v%d, v%d, v%d" % (vL, vL, vAl))
        for k in range(16):
            e("v_add_f32 v%d, v%d, v%d" % (vL, vL, vS+k))
        for p in range(8):
            e("v_cvt_pk_bf16_f32 v%d, v%d, v%d" % (vP+p, vS+2*p, vS+2*p+1))
        for r in range(64):
            e("v_mul_f32 v%d, v%d, v%d" % (vO+r, vO+r, vAl))
        e("s_waitcnt lgkmcnt(0)")
        e("s_nop 1")
        for t in range(2):
            for db in range(4):
                f = vF + (t*4+db)*4
                e("v_mfma_f32_32x32x16_bf16 %s, %s, %s, %s" % (vr(vO+db*16, 16), vr(f, 4), vr(vP+4*t, 4), vr(vO+db*16, 16)))
    nop(16)
    e("v_mov_b32 v%d, v%d" % (vT1, vL))
    e("s_nop 1")
    e("v_permlane32_swap_b32 v%d, v%d" % (vL, vT1))
    e("s_nop 1")
    e("v_add_f32 v%d, v%d, v%d" % (vL, vL, vT1))
    e("v_rcp_f32 v%d, v%d" % (vL, vL))
    e("s_nop 1")
    for r in range(64):
        e("v_mul_f32 v%d, v%d, v%d" % (vO+r, vO+r, vL))
    for db in range(4):
        for t in range(2):
            for p in range(4):
                r = vO + db*16 + 8*t + 2*p
                e("v_cvt_pk_bf16_f32 v%d, v%d, v%d" % (vQ + (2*db+t)*4 + p, r, r+1))
            e("buffer_store_dwordx4 %s, v%d, s[36:39], 0 offen offset:%d" % (vr(vQ+(2*db+t)*4, 4), vOut, (32*db+16*t)*2))
    e("s_branch A_end")
    INCONS[0]=False
    lab("A_prod")
    producer_setup(8192)
    tiles = [(28, u*32*8192, "W") for u in range(16)]
    for it in range(16):
        tiles.append((20, it*8192, "K")); tiles.append((24, it*8192, "V"))
    producer(tiles, "A_end")
    lab("A_end")
    e("s_endpgm")
    return K1

def kernel_oproj():
    K2 = "oproj_kernel"
    L.append(".globl %s" % K2); L.append(".p2align 8"); L.append(".type %s,@function" % K2)
    lab(K2)
    e("s_cmp_ge_u32 s2, 512"); e("s_cbranch_scc1 B_end")
    lane_setup()
    e("s_lshr_b32 s3, s2, 8")
    e("s_bfe_u32 s4, s2, 0x30005")
    e("s_bfe_u32 s5, s2, 0x20003")
    e("s_and_b32 s45, s2, 7")
    e("s_mul_i32 s6, s3, 40")
    e("s_add_u32 s6, s0, s6"); e("s_addc_u32 s7, s1, 0")
    e("s_load_dwordx2 s[8:9], s[6:7], 32")
    e("s_load_dwordx2 s[16:17], s[0:1], 96")
    e("s_waitcnt lgkmcnt(0)")
    e("s_lshl_b32 s41, s45, 19"); e("s_lshl_b32 s42, s5, 8"); e("s_add_u32 s41, s41, s42")
    e("s_add_u32 s28, s8, s41"); e("s_addc_u32 s29, s9, 0"); e("s_and_b32 s29, s29, 0xffff"); e("s_sub_u32 s30, 4194304, s41"); e("s_mov_b32 s31, 0x20000")
    e("s_mov_b32 s32, s16"); e("s_and_b32 s33, s17, 0xffff"); e("s_mov_b32 s34, 12582912"); e("s_mov_b32 s35, 0x20000")
    e("s_add_u32 s36, s16, %d" % WS_PART); e("s_addc_u32 s37, s17, 0"); e("s_and_b32 s37, s37, 0xffff"); e("s_mov_b32 s38, 25165824"); e("s_mov_b32 s39, 0x20000")
    e("s_cmp_eq_u32 s40, 3"); e("s_cbranch_scc1 B_prod")
    consumer_addr_setup(False)
    e("s_lshl_b32 s41, s40, 5")
    e("s_mul_i32 s42, s3, 768"); e("s_mul_i32 s43, s4, 96"); e("s_add_u32 s42, s42, s43"); e("s_add_u32 s42, s42, s41")
    e("v_add_u32 v8, s42, v1")
    e("v_lshlrev_b32 v9, 13, v8")
    e("s_lshl_b32 s43, s45, 10")
    e("v_add_u32 v9, s43, v9")
    e("v_lshl_add_u32 v%d, v2, 4, v9" % vBo)
    e("v_lshlrev_b32 v9, 11, v8")
    e("s_mul_i32 s43, s45, 3145728"); e("s_lshl_b32 s42, s5, 9"); e("s_add_u32 s43, s43, s42")
    e("v_add_u32 v9, s43, v9")
    e("v_lshl_add_u32 v%d, v2, 5, v9" % vOut)
    gemm_phase(16, 0, 32)
    nop(16)
    for db in range(4):
        for t in range(2):
            r = vO + db*16 + 8*t
            e("buffer_store_dwordx4 %s, v%d, s[36:39], 0 offen offset:%d" % (vr(r, 4), vOut, (32*db+16*t)*4))
            e("buffer_store_dwordx4 %s, v%d, s[36:39], 0 offen offset:%d" % (vr(r+4, 4), vOut, (32*db+16*t)*4+16))
    e("s_branch B_end")
    lab("B_prod")
    producer_setup(1024)
    tiles = [(28, u*32*1024, "W") for u in range(16)]
    producer(tiles, "B_end")
    lab("B_end")
    e("s_endpgm")
    return K2

def kernel_reduce():
    K3 = "reduce_kernel"
    L.append(".globl %s" % K3); L.append(".p2align 8"); L.append(".type %s,@function" % K3)
    lab(K3)
    e("s_cmp_ge_u32 s2, 384"); e("s_cbranch_scc1 C_end")
    e("s_load_dwordx2 s[8:9], s[0:1], 80")
    e("s_load_dwordx2 s[16:17], s[0:1], 96")
    e("s_waitcnt lgkmcnt(0)")
    e("s_add_u32 s36, s16, %d" % WS_PART); e("s_addc_u32 s37, s17, 0"); e("s_and_b32 s37, s37, 0xffff"); e("s_mov_b32 s38, 25165824"); e("s_mov_b32 s39, 0x20000")
    e("s_mov_b32 s32, s8"); e("s_and_b32 s33, s9, 0xffff"); e("s_mov_b32 s34, 1572864"); e("s_mov_b32 s35, 0x20000")
    e("s_lshl_b32 s3, s2, 8")
    e("v_add_u32 v1, s3, v0")
    e("v_lshlrev_b32 v2, 5, v1")
    for k in range(8):
        e("s_mov_b32 s41, %d" % (k*3145728))
        e("buffer_load_dwordx4 v[%d:%d], v2, s[36:39], s41 offen" % (8+8*k, 11+8*k))
        e("buffer_load_dwordx4 v[%d:%d], v2, s[36:39], s41 offen offset:16" % (12+8*k, 15+8*k))
    e("v_lshrrev_b32 v3, 6, v1")
    e("v_and_b32 v4, 63, v1")
    e("v_cmp_le_u32 vcc, 768, v3")
    e("s_nop 1")
    e("v_cndmask_b32 v5, 0, 1, vcc")
    e("v_mul_u32_u24 v6, 768, v5")
    e("v_sub_u32 v3, v3, v6")
    e("v_lshlrev_b32 v3, 11, v3")
    e("v_lshl_add_u32 v3, v5, 10, v3")
    e("v_lshl_add_u32 v3, v4, 4, v3")
    e("s_waitcnt vmcnt(0)")
    for k in range(1, 8):
        for r in range(8):
            e("v_add_f32 v%d, v%d, v%d" % (8+r, 8+r, 8+8*k+r))
    for p in range(4):
        e("v_cvt_pk_bf16_f32 v%d, v%d, v%d" % (80+p, 8+2*p, 9+2*p))
    e("buffer_store_dwordx4 v[80:83], v3, s[32:35], 0 offen")
    lab("C_end")
    e("s_endpgm")
    return K3

hdr = """; @launch kernel=attn_kernel grid=(512,1,1) block=(256,1,1) lds=65536
; @launch kernel=oproj_kernel grid=(512,1,1) block=(256,1,1) lds=65536
; @launch kernel=reduce_kernel grid=(384,1,1) block=(256,1,1) lds=0
.amdgcn_target "amdgcn-amd-amdhsa--gfx950"
.text
"""
ks = [(kernel_attn(), NV), (kernel_oproj(), NV), (kernel_reduce(), 88)]
body = "\n".join(L) + "\n"
tail = '.section .rodata,"a"\n'
for k, nv in ks:
    tail += """.p2align 6
.amdhsa_kernel %s
  .amdhsa_next_free_vgpr %d
  .amdhsa_next_free_sgpr 96
  .amdhsa_accum_offset %d
  .amdhsa_group_segment_fixed_size 0
  .amdhsa_kernarg_size 104
  .amdhsa_user_sgpr_count 2
  .amdhsa_user_sgpr_kernarg_segment_ptr 1
  .amdhsa_system_sgpr_workgroup_id_x 1
.end_amdhsa_kernel
""" % (k, nv, nv)
open(OUT, "w").write(hdr + body + tail)
print("written", len(L), "lines")
```

```python
import os
NAME = "concat_heads__gqa_block_cached__gqa_block_cached__near_ridge"
OUT = os.environ.get("OUTF", "cdna_kernels/%s.s" % NAME)
import os
SKIP = os.environ.get("SKIP","0")=="1"
L = []
def e(s):
    if SKIP and INCONS[0] and not s.startswith("s_barrier") and not s.startswith("s_branch"): return
    L.append("    " + s)
INCONS=[False]
def lab(s): L.append(s + ":")
def nop(n):
    while n > 0:
        k = min(n, 16); e("s_nop %d" % (k-1)); n -= k

NS = int(os.environ.get("NS","8"))
D = int(os.environ.get("DD","6"))
WS_PART = 16*1024*1024

def vr(base, n=1):
    return "v%d" % base if n == 1 else "v[%d:%d]" % (base, base+n-1)

vQ = 0
vO = 32
vS = 96
vP = 112
vF = 120
vB = 152
vKa = 176
vVa = 184
vWa = 188
vBo = 192
vM = 193; vL = 194; vT0 = 195; vT1 = 196; vT2 = 197; vAl = 198; vOut = 199
vLane = 200
NV = 208

def lane_setup():
    e("v_and_b32 v%d, 63, v0" % vLane)
    e("v_lshrrev_b32 v1, 6, v0")
    e("s_nop 0")
    e("v_readfirstlane_b32 s40, v1")

def consumer_addr_setup(need_k):
    l = vLane
    e("v_and_b32 v1, 31, v%d" % l)
    e("v_lshrrev_b32 v2, 5, v%d" % l)
    e("v_bfe_u32 v3, v%d, 2, 2" % l)
    e("v_and_b32 v4, 3, v%d" % l)
    e("v_bfe_u32 v5, v%d, 4, 1" % l)
    if need_k:
        e("v_and_b32 v6, 15, v1")
        e("v_lshlrev_b32 v7, 8, v1")
        for s in range(8):
            e("v_add_u32 v8, %d, v2" % (2*s))
            e("v_xor_b32 v8, v8, v6")
            e("v_lshlrev_b32 v8, 4, v8")
            e("v_add_u32 v%d, v7, v8" % (vKa+s))
    e("v_and_b32 v8, 1, v4")
    e("v_lshl_add_u32 v8, v5, 1, v8")
    e("v_lshlrev_b32 v8, 4, v8")
    e("v_lshrrev_b32 v9, 1, v4")
    e("v_lshl_add_u32 v8, v9, 3, v8")
    for db in range(4):
        e("v_xor_b32 v9, %d, v3" % db)
        e("v_lshl_add_u32 v9, v9, 6, v8")
        e("v_lshl_add_u32 v10, v2, 2, v3")
        e("v_lshl_add_u32 v%d, v10, 8, v9" % (vVa+db))
        e("v_lshl_add_u32 v10, v2, 3, v3")
        e("v_lshl_add_u32 v%d, v10, 8, v9" % (vWa+db))

def producer(tiles, label_end):
    base = {"K": 8, "V": 16, "W": 24}
    T = len(tiles)
    for t, (srd, soff, ty) in enumerate(tiles):
        slot = t % NS
        if ty in "KV" and ROT:
            e("s_add_u32 s41, s46, %d" % (soff//8192)); e("s_and_b32 s41, s41, 15"); e("s_lshl_b32 s41, s41, 13")
        else:
            e("s_mov_b32 s41, %d" % soff)
        for n in range(8):
            e("s_mov_b32 m0, %d" % (slot*8192 + n*1024))
            e("s_nop 0")
            e("buffer_load_dwordx4 v%d, s[%d:%d], s41 offen lds" % (base[ty]+n, srd, srd+3))
        if t >= D:
            e("s_waitcnt vmcnt(%d)" % (8*D))
            e("s_barrier")
    for u in range(T-D, T):
        e("s_waitcnt vmcnt(%d)" % (8*(T-1-u)))
        e("s_barrier")
    e("s_branch %s" % label_end)

ROT = os.environ.get("ROT","0")=="1"
def producer_setup(wrs):
    e("s_mul_i32 s46, s2, 5"); e("s_lshr_b32 s47, s2, 4"); e("s_add_u32 s46, s46, s47"); e("s_and_b32 s46, s46, 15")
    l = vLane
    e("v_lshrrev_b32 v2, 4, v%d" % l)
    e("v_and_b32 v3, 15, v%d" % l)
    e("s_mov_b32 s42, %d" % wrs)
    e("v_lshlrev_b32 v4, 2, v2")
    e("v_xor_b32 v4, v4, v3")
    e("v_lshlrev_b32 v4, 4, v4")
    for n in range(8):
        e("v_add_u32 v5, %d, v2" % (4*n))
        e("v_and_b32 v6, 15, v5")
        e("v_xor_b32 v6, v6, v3")
        e("v_lshlrev_b32 v6, 4, v6")
        e("v_lshl_add_u32 v%d, v5, 8, v6" % (8+n))
        e("v_lshl_add_u32 v%d, v5, 8, v4" % (16+n))
        e("v_mul_lo_u32 v6, v5, s42")
        e("v_add_u32 v%d, v6, v4" % (24+n))

def gemm_phase(ntiles, t0, bsrd):
    def bload(u):
        if u >= ntiles: return
        for kk in range(2):
            e("buffer_load_dwordx4 %s, v%d, s[%d:%d], 0 offen offset:%d" % (vr(vB + (u%3)*8 + kk*4, 4), vBo, bsrd, bsrd+3, u*64+kk*32))
    bload(0); bload(1)
    for u in range(ntiles):
        slot = (t0+u) % NS
        bload(u+2)
        e("s_barrier")
        for kk in range(2):
            for db in range(4):
                f = vF + (kk*4+db)*4
                for uu in range(2):
                    e("ds_read_b64_tr_b16 %s, v%d offset:%d" % (vr(f+2*uu, 2), vWa+db, slot*8192 + (16*kk+4*uu)*256))
        rem = 2*min(2, ntiles-1-u)
        e("s_waitcnt vmcnt(%d) lgkmcnt(0)" % rem)
        for kk in range(2):
            for db in range(4):
                f = vF + (kk*4+db)*4
                c = "0" if (u == 0 and kk == 0) else vr(vO+db*16, 16)
                e("v_mfma_f32_32x32x16_bf16 %s, %s, %s, %s" % (vr(vO+db*16, 16), vr(f, 4), vr(vB+(u%3)*8+kk*4, 4), c))

def kernel_attn():
    K1 = "attn_kernel"
    L.append(".globl %s" % K1); L.append(".p2align 8"); L.append(".type %s,@function" % K1)
    lab(K1)
    e("s_cmp_ge_u32 s2, 512"); e("s_cbranch_scc1 A_end")
    lane_setup()
    e("s_lshr_b32 s3, s2, 8")
    e("s_bfe_u32 s4, s2, 0x30005")
    e("s_and_b32 s5, s2, 31")
    e("s_mul_i32 s6, s3, 40")
    e("s_add_u32 s6, s0, s6"); e("s_addc_u32 s7, s1, 0")
    e("s_load_dwordx4 s[8:11], s[6:7], 0")
    e("s_load_dwordx4 s[12:15], s[6:7], 16")
    e("s_load_dwordx2 s[16:17], s[0:1], 96")
    e("s_waitcnt lgkmcnt(0)")
    e("s_lshl_b32 s41, s4, 5"); e("s_add_u32 s41, s41, s5"); e("s_lshl_b32 s41, s41, 17")
    e("s_add_u32 s20, s10, s41"); e("s_addc_u32 s21, s11, 0"); e("s_and_b32 s21, s21, 0xffff"); e("s_mov_b32 s22, 131072"); e("s_mov_b32 s23, 0x20000")
    e("s_add_u32 s24, s12, s41"); e("s_addc_u32 s25, s13, 0"); e("s_and_b32 s25, s25, 0xffff"); e("s_mov_b32 s26, 131072"); e("s_mov_b32 s27, 0x20000")
    e("s_lshl_b32 s41, s5, 8")
    e("s_add_u32 s28, s14, s41"); e("s_addc_u32 s29, s15, 0"); e("s_and_b32 s29, s29, 0xffff"); e("s_sub_u32 s30, 4194304, s41"); e("s_mov_b32 s31, 0x20000")
    e("s_mul_i32 s41, s4, 98304")
    e("s_add_u32 s32, s8, s41"); e("s_addc_u32 s33, s9, 0"); e("s_and_b32 s33, s33, 0xffff"); e("s_mov_b32 s34, 98304"); e("s_mov_b32 s35, 0x20000")
    e("s_mov_b32 s36, s16"); e("s_and_b32 s37, s17, 0xffff"); e("s_mov_b32 s38, 12582912"); e("s_mov_b32 s39, 0x20000")
    e("s_cmp_eq_u32 s40, 3"); e("s_cbranch_scc1 A_prod")
    consumer_addr_setup(True)
    e("s_lshl_b32 s41, s40, 5")
    e("v_add_u32 v8, s41, v1")
    e("v_lshlrev_b32 v8, 10, v8")
    e("v_lshl_add_u32 v%d, v2, 4, v8" % vBo)
    e("s_mul_i32 s42, s3, 768"); e("s_mul_i32 s43, s4, 96"); e("s_add_u32 s42, s42, s43"); e("s_add_u32 s42, s42, s41")
    e("v_add_u32 v8, s42, v1")
    e("v_lshlrev_b32 v8, 13, v8")
    e("s_lshl_b32 s43, s5, 8")
    e("v_add_u32 v8, s43, v8")
    e("v_lshl_add_u32 v%d, v2, 4, v8" % vOut)
    e("s_mov_b32 s44, 0x3e0293ee")
    INCONS[0]=True
    gemm_phase(16, 0, 32)
    nop(16)
    for db in range(4):
        for t in range(2):
            for p in range(4):
                r = vO + db*16 + 8*t + 2*p
                e("v_cvt_pk_bf16_f32 v%d, v%d, v%d" % (vQ + (2*db+t)*4 + p, r, r+1))
    for r in range(64): e("v_mov_b32 v%d, 0" % (vO+r))
    e("v_mov_b32 v%d, 0xff800000" % vM); e("v_mov_b32 v%d, 0" % vL)
    for it in range(16):
        ks = (16 + 2*it) % NS; vs = (17 + 2*it) % NS
        e("s_barrier")
        for s in range(8):
            e("ds_read_b128 %s, v%d offset:%d" % (vr(vF+4*s, 4), vKa+s, ks*8192))
        e("s_waitcnt lgkmcnt(0)")
        for s in range(8):
            c = "0" if s == 0 else vr(vS, 16)
            e("v_mfma_f32_32x32x16_bf16 %s, %s, %s, %s" % (vr(vS, 16), vr(vF+4*s, 4), vr(vQ+4*s, 4), c))
        e("s_barrier")
        for t in range(2):
            for db in range(4):
                f = vF + (t*4+db)*4
                for uu in range(2):
                    e("ds_read_b64_tr_b16 %s, v%d offset:%d" % (vr(f+2*uu, 2), vVa+db, vs*8192 + (16*t+8*uu)*256))
        nop(8)
        e("v_max3_f32 v%d, v%d, v%d, v%d" % (vT0, vS, vS+1, vS+2))
        for k in range(3, 15, 2):
            e("v_max3_f32 v%d, v%d, v%d, v%d" % (vT0, vT0, vS+k, vS+k+1))
        e("v_max_f32 v%d, v%d, v%d" % (vT0, vT0, vS+15))
        e("v_mov_b32 v%d, v%d" % (vT1, vT0))
        e("s_nop 1")
        e("v_permlane32_swap_b32 v%d, v%d" % (vT0, vT1))
        e("s_nop 1")
        e("v_max3_f32 v%d, v%d, v%d, v%d" % (vT0, vT0, vT1, vM))
        e("v_sub_f32 v%d, v%d, v%d" % (vT1, vM, vT0))
        e("v_mul_f32 v%d, s44, v%d" % (vT1, vT1))
        e("v_exp_f32 v%d, v%d" % (vAl, vT1))
        e("v_mov_b32 v%d, v%d" % (vM, vT0))
        e("v_mul_f32 v%d, s44, v%d" % (vT0, vT0))
        for k in range(16):
            e("v_fma_f32 v%d, v%d, s44, -v%d" % (vS+k, vS+k, vT0))
        for k in range(16):
            e("v_exp_f32 v%d, v%d" % (vS+k, vS+k))
        e("v_mul_f32 v%d, v%d, v%d" % (vL, vL, vAl))
        for k in range(16):
            e("v_add_f32 v%d, v%d, v%d" % (vL, vL, vS+k))
        for p in range(8):
            e("v_cvt_pk_bf16_f32 v%d, v%d, v%d" % (vP+p, vS+2*p, vS+2*p+1))
        for r in range(64):
            e("v_mul_f32 v%d, v%d, v%d" % (vO+r, vO+r, vAl))
        e("s_waitcnt lgkmcnt(0)")
        e("s_nop 1")
        for t in range(2):
            for db in range(4):
                f = vF + (t*4+db)*4
                e("v_mfma_f32_32x32x16_bf16 %s, %s, %s, %s" % (vr(vO+db*16, 16), vr(f, 4), vr(vP+4*t, 4), vr(vO+db*16, 16)))
    nop(16)
    e("v_mov_b32 v%d, v%d" % (vT1, vL))
    e("s_nop 1")
    e("v_permlane32_swap_b32 v%d, v%d" % (vL, vT1))
    e("s_nop 1")
    e("v_add_f32 v%d, v%d, v%d" % (vL, vL, vT1))
    e("v_rcp_f32 v%d, v%d" % (vL, vL))
    e("s_nop 1")
    for r in range(64):
        e("v_mul_f32 v%d, v%d, v%d" % (vO+r, vO+r, vL))
    for db in range(4):
        for t in range(2):
            for p in range(4):
                r = vO + db*16 + 8*t + 2*p
                e("v_cvt_pk_bf16_f32 v%d, v%d, v%d" % (vQ + (2*db+t)*4 + p, r, r+1))
            e("buffer_store_dwordx4 %s, v%d, s[36:39], 0 offen offset:%d" % (vr(vQ+(2*db+t)*4, 4), vOut, (32*db+16*t)*2))
    e("s_branch A_end")
    INCONS[0]=False
    lab("A_prod")
    producer_setup(8192)
    tiles = [(28, u*32*8192, "W") for u in range(16)]
    for it in range(16):
        tiles.append((20, it*8192, "K")); tiles.append((24, it*8192, "V"))
    producer(tiles, "A_end")
    lab("A_end")
    e("s_endpgm")
    return K1

def kernel_oproj():
    K2 = "oproj_kernel"
    L.append(".globl %s" % K2); L.append(".p2align 8"); L.append(".type %s,@function" % K2)
    lab(K2)
    e("s_cmp_ge_u32 s2, 256"); e("s_cbranch_scc1 B_end")
    lane_setup()
    e("s_lshr_b32 s3, s2, 7")
    e("s_bfe_u32 s4, s2, 0x30004")
    e("s_bfe_u32 s5, s2, 0x20002")
    e("s_and_b32 s45, s2, 3")
    e("s_mul_i32 s6, s3, 40")
    e("s_add_u32 s6, s0, s6"); e("s_addc_u32 s7, s1, 0")
    e("s_load_dwordx2 s[8:9], s[6:7], 32")
    e("s_load_dwordx2 s[16:17], s[0:1], 96")
    e("s_waitcnt lgkmcnt(0)")
    e("s_lshl_b32 s41, s45, 20"); e("s_lshl_b32 s42, s5, 8"); e("s_add_u32 s41, s41, s42")
    e("s_add_u32 s28, s8, s41"); e("s_addc_u32 s29, s9, 0"); e("s_and_b32 s29, s29, 0xffff"); e("s_sub_u32 s30, 4194304, s41"); e("s_mov_b32 s31, 0x20000")
    e("s_mov_b32 s32, s16"); e("s_and_b32 s33, s17, 0xffff"); e("s_mov_b32 s34, 12582912"); e("s_mov_b32 s35, 0x20000")
    e("s_add_u32 s36, s16, %d" % WS_PART); e("s_addc_u32 s37, s17, 0"); e("s_and_b32 s37, s37, 0xffff"); e("s_mov_b32 s38, 25165824"); e("s_mov_b32 s39, 0x20000")
    e("s_cmp_eq_u32 s40, 3"); e("s_cbranch_scc1 B_prod")
    consumer_addr_setup(False)
    e("s_lshl_b32 s41, s40, 5")
    e("s_mul_i32 s42, s3, 768"); e("s_mul_i32 s43, s4, 96"); e("s_add_u32 s42, s42, s43"); e("s_add_u32 s42, s42, s41")
    e("v_add_u32 v8, s42, v1")
    e("v_lshlrev_b32 v9, 13, v8")
    e("s_lshl_b32 s43, s45, 11")
    e("v_add_u32 v9, s43, v9")
    e("v_lshl_add_u32 v%d, v2, 4, v9" % vBo)
    e("v_lshlrev_b32 v9, 11, v8")
    e("s_mul_i32 s43, s45, 3145728"); e("s_lshl_b32 s42, s5, 9"); e("s_add_u32 s43, s43, s42")
    e("v_add_u32 v9, s43, v9")
    e("v_lshl_add_u32 v%d, v2, 5, v9" % vOut)
    gemm_phase(32, 0, 32)
    nop(16)
    for db in range(4):
        for t in range(2):
            r = vO + db*16 + 8*t
            e("buffer_store_dwordx4 %s, v%d, s[36:39], 0 offen offset:%d" % (vr(r, 4), vOut, (32*db+16*t)*4))
            e("buffer_store_dwordx4 %s, v%d, s[36:39], 0 offen offset:%d" % (vr(r+4, 4), vOut, (32*db+16*t)*4+16))
    e("s_branch B_end")
    lab("B_prod")
    producer_setup(1024)
    tiles = [(28, u*32*1024, "W") for u in range(32)]
    producer(tiles, "B_end")
    lab("B_end")
    e("s_endpgm")
    return K2

def kernel_reduce():
    K3 = "reduce_kernel"
    L.append(".globl %s" % K3); L.append(".p2align 8"); L.append(".type %s,@function" % K3)
    lab(K3)
    e("s_cmp_ge_u32 s2, 384"); e("s_cbranch_scc1 C_end")
    e("s_load_dwordx2 s[8:9], s[0:1], 80")
    e("s_load_dwordx2 s[16:17], s[0:1], 96")
    e("s_waitcnt lgkmcnt(0)")
    e("s_add_u32 s36, s16, %d" % WS_PART); e("s_addc_u32 s37, s17, 0"); e("s_and_b32 s37, s37, 0xffff"); e("s_mov_b32 s38, 25165824"); e("s_mov_b32 s39, 0x20000")
    e("s_mov_b32 s32, s8"); e("s_and_b32 s33, s9, 0xffff"); e("s_mov_b32 s34, 1572864"); e("s_mov_b32 s35, 0x20000")
    e("s_lshl_b32 s3, s2, 8")
    e("v_add_u32 v1, s3, v0")
    e("v_lshlrev_b32 v2, 5, v1")
    for k in range(4):
        e("s_mov_b32 s41, %d" % (k*3145728))
        e("buffer_load_dwordx4 v[%d:%d], v2, s[36:39], s41 offen" % (8+8*k, 11+8*k))
        e("buffer_load_dwordx4 v[%d:%d], v2, s[36:39], s41 offen offset:16" % (12+8*k, 15+8*k))
    e("v_lshrrev_b32 v3, 6, v1")
    e("v_and_b32 v4, 63, v1")
    e("v_cmp_le_u32 vcc, 768, v3")
    e("s_nop 1")
    e("v_cndmask_b32 v5, 0, 1, vcc")
    e("v_mul_u32_u24 v6, 768, v5")
    e("v_sub_u32 v3, v3, v6")
    e("v_lshlrev_b32 v3, 11, v3")
    e("v_lshl_add_u32 v3, v5, 10, v3")
    e("v_lshl_add_u32 v3, v4, 4, v3")
    e("s_waitcnt vmcnt(0)")
    for k in range(1, 4):
        for r in range(8):
            e("v_add_f32 v%d, v%d, v%d" % (8+r, 8+r, 8+8*k+r))
    for p in range(4):
        e("v_cvt_pk_bf16_f32 v%d, v%d, v%d" % (80+p, 8+2*p, 9+2*p))
    e("buffer_store_dwordx4 v[80:83], v3, s[32:35], 0 offen")
    lab("C_end")
    e("s_endpgm")
    return K3

hdr = """; @launch kernel=attn_kernel grid=(512,1,1) block=(256,1,1) lds=65536
; @launch kernel=oproj_kernel grid=(256,1,1) block=(256,1,1) lds=65536
; @launch kernel=reduce_kernel grid=(384,1,1) block=(256,1,1) lds=0
.amdgcn_target "amdgcn-amd-amdhsa--gfx950"
.text
"""
ks = [(kernel_attn(), NV), (kernel_oproj(), NV), (kernel_reduce(), 88)]
body = "\n".join(L) + "\n"
tail = '.section .rodata,"a"\n'
for k, nv in ks:
    tail += """.p2align 6
.amdhsa_kernel %s
  .amdhsa_next_free_vgpr %d
  .amdhsa_next_free_sgpr 96
  .amdhsa_accum_offset %d
  .amdhsa_group_segment_fixed_size 0
  .amdhsa_kernarg_size 104
  .amdhsa_user_sgpr_count 2
  .amdhsa_user_sgpr_kernarg_segment_ptr 1
  .amdhsa_system_sgpr_workgroup_id_x 1
.end_amdhsa_kernel
""" % (k, nv, nv)
open(OUT, "w").write(hdr + body + tail)
print("written", len(L), "lines")
```
